```python
import torch

def _softmax(x, axis=-1):
    return torch.softmax(x, dim=axis)
def _gelu(x):
    return torch.nn.functional.gelu(x, approximate="tanh")
def _silu(x):
    return torch.nn.functional.silu(x)
def _sigmoid(x):
    return torch.sigmoid(x)
def _layernorm(x, axis=-1, eps=1e-5):
    m = x.mean(dim=axis, keepdim=True)
    v = x.var(dim=axis, keepdim=True, unbiased=False)
    return (x - m) / torch.sqrt(v + eps)
def _scatter_add(tgt, idx, src, axis=0):
    return tgt.clone().index_add_(axis, idx, src)
def _segment_sum(src, seg, n):
    out = torch.zeros((n,) + src.shape[1:], dtype=src.dtype)
    return out.index_add_(0, seg, src)
def _pad(x, pw):
    flat = tuple(v for pair in reversed(pw) for v in pair)
    return torch.nn.functional.pad(x, flat)

kernel_name = 'sequential_preLN__mha_block_cached__dense_activation_silu__decode'

def setup_inputs():

    _w = (lambda a: (lambda t: t.to(torch.bfloat16) if t.is_floating_point() else t)(torch.as_tensor(a)))
    def _A_setup():
        B, Sq, D = 2, 1, 640
        H, Sk, Dh = 32, 8192, 192
        return {
            "x": _w((lambda *s: torch.randn(*s, dtype=torch.bfloat16) * 0.05)(B, Sq, D)),
            "k_cache": _w((lambda *s: torch.randn(*s, dtype=torch.bfloat16) * 3.2)(B, H, Sk, Dh)),
            "v_cache": _w((lambda *s: torch.randn(*s, dtype=torch.bfloat16) * 0.8)(B, H, Sk, Dh)),
            "wq": _w((lambda *s: torch.randn(*s, dtype=torch.bfloat16) * 3.2)(D, H * Dh) * (D ** -0.5)),
            "wo": _w((lambda *s: torch.randn(*s, dtype=torch.bfloat16) * 0.8)(H * Dh, D) * ((H * Dh) ** -0.5)),
        }
    _A_in = _A_setup()

    def _B_setup():
        B, S, D, F = 2, 1, 640, 1536
        return {
            "x": _w((lambda *s: torch.randn(*s, dtype=torch.bfloat16) * 0.05)(B, S, D)),
            "w1": _w((lambda *s: torch.randn(*s, dtype=torch.bfloat16) * 3.2)(D, F) * (D ** -0.5)),
            "w2": _w((lambda *s: torch.randn(*s, dtype=torch.bfloat16) * 0.8)(F, D) * (F ** -0.5)),
        }
    _B_in = _B_setup()

    return {
        "A_x": _A_in["x"],
        "A_k_cache": _A_in["k_cache"],
        "A_v_cache": _A_in["v_cache"],
        "A_wq": _A_in["wq"],
        "A_wo": _A_in["wo"],
        "B_x": _B_in["x"],
        "B_w1": _B_in["w1"],
        "B_w2": _B_in["w2"],
    }

def reference(A_x, A_k_cache, A_v_cache, A_wq, A_wo, B_x, B_w1, B_w2):
    def _A_ref(x, k_cache, v_cache, wq, wo):
        B, Sq, D = x.shape
        H, Dh = 32, 192
        q = (lambda x, *d: x.permute(*d))((x @ wq).reshape(B, Sq, H, Dh), 0, 2, 1, 3)
        scores = torch.einsum("bhqd,bhkd->bhqk", q, k_cache) * (Dh ** -0.5)
        p = _softmax(scores, axis=-1)
        o = torch.einsum("bhqk,bhkd->bhqd", p, v_cache)
        return (lambda x, *d: x.permute(*d))(o, 0, 2, 1, 3).reshape(B, Sq, H * Dh) @ wo

    def _B_ref(x, w1, w2):
        h = torch.einsum("bsd,df->bsf", x, w1)
        h = _silu(h)
        out = torch.einsum("bsf,fd->bsd", h, w2)
        return out

    x = A_x
    h = x + _A_ref(_layernorm(x, axis=-1), A_k_cache, A_v_cache, A_wq, A_wo)
    h2 = h + _B_ref(_layernorm(h, axis=-1), B_w1, B_w2)
    return h2
```

```python
import re

TRANS = ("v_exp_f32", "v_log_f32", "v_rcp_f32", "v_rsq_f32", "v_sqrt_f32", "v_sin_f32", "v_cos_f32",
         "v_rcp_iflag_f32")

_reg_re = re.compile(r"^(-|abs\(|\|)?\s*([vsa])(\d+)\)?\|?$")
_rng_re = re.compile(r"^(-|abs\(|\|)?\s*([vsa])\[(\d+):(\d+)\]\)?\|?$")


def regs_of(op):
    op = op.strip()
    m = _reg_re.match(op)
    if m:
        return [(m.group(2), int(m.group(3)))]
    m = _rng_re.match(op)
    if m:
        return [(m.group(2), i) for i in range(int(m.group(3)), int(m.group(4)) + 1)]
    if op == "vcc":
        return [("s", 106), ("s", 107)]
    if op == "vcc_lo":
        return [("s", 106)]
    if op == "vcc_hi":
        return [("s", 107)]
    if op == "exec":
        return [("s", 126), ("s", 127)]
    if op == "m0":
        return [("s", 124)]
    return []


def split_ops(rest):
    out, depth, cur = [], 0, ""
    for ch in rest:
        if ch in "[(":
            depth += 1
        elif ch in "])":
            depth -= 1
        if ch == "," and depth == 0:
            out.append(cur.strip())
            cur = ""
        else:
            cur += ch
    if cur.strip():
        out.append(cur.strip())
    mods = ""
    if out:
        last = out[-1]
        depth = 0
        for i, ch in enumerate(last):
            if ch in "[(":
                depth += 1
            elif ch in "])":
                depth -= 1
            elif ch == " " and depth == 0:
                mods = last[i:]
                last = last[:i]
                break
        out[-1] = last
    return out, mods


class Ins:
    def __init__(self, text):
        self.text = text
        t = text.split(";")[0].strip()
        parts = t.split(None, 1)
        self.op = parts[0]
        ops, mods = split_ops(parts[1]) if len(parts) > 1 else ([], "")
        self.ops, self.mods = ops, mods
        op = self.op
        self.base = re.sub(r"_(e32|e64|dpp|sdwa)$", "", op)
        self.is_valu = op.startswith("v_") and not op.startswith("v_mfma") and not op.startswith("v_smfmac")
        self.is_mfma = op.startswith("v_mfma")
        self.is_salu = op.startswith("s_")
        self.is_vmem = op.startswith(("global_", "buffer_", "flat_", "scratch_"))
        self.is_ds = op.startswith("ds_")
        self.is_dpp = op.endswith("_dpp") or any(k in mods for k in ("quad_perm", "row_", "wave_"))
        self.is_trans = self.base in TRANS
        self.is_dot = self.base.startswith("v_dot")
        self.is_perml = self.base.startswith("v_permlane")
        self.is_rdlane = self.base in ("v_readlane_b32", "v_readfirstlane_b32")
        self.w, self.r = self._rw()

    def _rw(self):
        op, ops = self.base, self.ops
        R = lambda xs: [g for o in xs for g in regs_of(o)]
        w, r = [], []
        if self.is_valu or self.is_mfma:
            if op.startswith("v_cmp"):
                w = R(ops[:1]); r = R(ops[1:])
                if op.startswith("v_cmpx"):
                    w += regs_of("exec")
            elif op in ("v_add_co_u32", "v_sub_co_u32", "v_subrev_co_u32"):
                w = R(ops[:2]); r = R(ops[2:])
            elif op in ("v_addc_co_u32", "v_subb_co_u32", "v_subbrev_co_u32"):
                w = R(ops[:2]); r = R(ops[2:])
            elif op in ("v_div_scale_f32", "v_mad_u64_u32", "v_mad_i64_i32"):
                w = R(ops[:2]); r = R(ops[2:])
            elif self.is_perml and "swap" in op:
                w = R(ops[:2]); r = R(ops[:2])
            elif op == "v_nop":
                pass
            else:
                w = R(ops[:1]); r = R(ops[1:])
                if op in ("v_fmac_f32", "v_dot2c_f32_bf16", "v_dot2c_f32_f16", "v_pk_fmac_f16", "v_writelane_b32",
                          "v_div_fmas_f32") or self.is_dpp:
                    r += R(ops[:1])
                if op == "v_div_fmas_f32":
                    r += regs_of("vcc")
                if op == "v_cndmask_b32" and len(ops) == 3:
                    r += regs_of("vcc")
        elif self.is_vmem:
            if "load" in op and "lds" not in op and "lds" not in self.mods.split():
                w = R(ops[:1]); r = R(ops[1:])
            elif "atomic" in op and "sc0" in self.mods.split():
                w = R(ops[:1]); r = R(ops[1:])
            else:
                r = R(ops)
            if "lds" in op or "lds" in self.mods.split():
                r += regs_of("m0")
        elif self.is_ds:
            if op.startswith(("ds_read", "ds_bpermute", "ds_permute", "ds_swizzle")) or "_rtn" in op:
                w = R(ops[:1]); r = R(ops[1:])
            else:
                r = R(ops)
        elif self.is_salu:
            if op.startswith(("s_cmp", "s_cbranch", "s_branch", "s_waitcnt", "s_nop", "s_barrier", "s_endpgm",
                              "s_sleep", "s_setprio", "s_bitcmp")):
                r = R(ops)
            else:
                w = R(ops[:1]); r = R(ops[1:])
                if "saveexec" in op:
                    w += regs_of("exec")
        return w, r

    def states(self):
        if self.op == "s_nop":
            return int(self.ops[0], 0) + 1
        return 1


def mfma_passes(op):
    if "16x16x32" in op or "16x16x16" in op:
        return 4
    if "32x32x16" in op or "32x32x8" in op:
        return 8
    if "4x4x4" in op:
        return 2
    return 16


def fix_hazards(lines, verbose=False):
    out = []
    hist = []
    now = 0
    n_ins = 0
    for line in lines:
        s = line.split(";")[0].strip()
        if not s or s.endswith(":") or s.startswith("."):
            out.append(line)
            continue
        ins = Ins(line)
        need = 0
        rset, wset = set(ins.r), set(ins.w)
        for p, t in hist[-24:]:
            pw = set(p.w)
            d = 0
            vw = {g for g in pw if g[0] in "va"}
            sw = {g for g in pw if g[0] == "s"}
            if p.is_valu:
                if vw & rset:
                    if ins.is_dpp or ins.is_perml or ins.is_mfma:
                        d = max(d, 2)
                    if ins.is_rdlane:
                        d = max(d, 1)
                    if p.is_trans and ins.is_valu and not ins.is_trans:
                        d = max(d, 1)
                    if p.is_trans and (ins.is_vmem or ins.is_ds):
                        d = max(d, 1)
                if p.is_dot and (vw & (rset | wset)):
                    same = ins.base == p.base
                    if same:
                        ab = set()
                        for o in ins.ops[1:3]:
                            ab |= set(regs_of(o))
                        if vw & ab:
                            d = max(d, 3)
                    else:
                        d = max(d, 3)
                if sw & rset:
                    if ins.is_vmem:
                        d = max(d, 5)
                    elif ins.is_valu or ins.is_mfma:
                        d = max(d, 2)
                        if ins.base in ("v_readlane_b32", "v_writelane_b32", "v_div_fmas_f32"):
                            d = max(d, 4)
                    elif ins.is_salu:
                        d = max(d, 1)
                if ("s", 126) in sw:
                    if ins.is_dpp:
                        d = max(d, 5)
                    elif ins.is_rdlane or ins.is_perml or ins.is_mfma:
                        d = max(d, 4)
            if p.is_salu and ("s", 124) in sw and ("s", 124) in rset:
                d = max(d, 1)
            if p.is_vmem and ("store" in p.op or "atomic" in p.op) and re.search(r"x[34]\b", p.op):
                data = set()
                for o in p.ops:
                    g = regs_of(o)
                    if len(g) >= 3 and g[0][0] in "va":
                        data |= set(g)
                if data & wset:
                    d = max(d, 2)
            if p.is_mfma:
                ps = mfma_passes(p.op)
                tab = {2: 0, 4: 1, 8: 2, 16: 3}[ps]
                if vw & (rset | wset):
                    if ins.is_mfma:
                        c = set(regs_of(ins.ops[3]))
                        ab = set(regs_of(ins.ops[1])) | set(regs_of(ins.ops[2]))
                        if vw & ab:
                            d = max(d, [5, 8, 12, 20][tab])
                        if vw & c:
                            if c == vw and mfma_passes(ins.op) == ps:
                                d = max(d, [2, 0, 0, 0][tab])
                            else:
                                d = max(d, [4, 6, 10, 18][tab])
                    else:
                        d = max(d, [5, 8, 12, 20][tab])
                c = set(regs_of(p.ops[3]))
                if ins.is_valu and (c & wset):
                    d = max(d, [1, 3, 7, 15][tab])
            if d:
                need = max(need, t + 1 + d)
        if need > now:
            k = need - now
            while k > 0:
                n = min(k, 16)
                out.append(f"    s_nop {n-1}")
                now += n
                k -= n
                n_ins += 1
        out.append(line)
        hist.append((ins, now))
        if len(hist) > 64:
            hist = hist[-32:]
        now += ins.states()
    if verbose:
        print("inserted nops:", n_ins)
    return out
```

```python
import sys, struct
from asmlib import fix_hazards

def f2u(f): return struct.unpack("<I", struct.pack("<f", f))[0]
LOG2E = f2u(1.4426950408889634)
SCALE = f2u(192 ** -0.5)
NEG_INF = 0xff800000

WS_Q = 0
WS_PART = 0x10000
WS_HACC = 0x200000
WS_H1 = 0x210000
PART_STRIDE = 1024

DPP = "row_mask:0xf bank_mask:0xf"

class G:
    def __init__(self): self.L = []
    def __call__(self, s):
        for ln in s.split("\n"):
            ln = ln.strip()
            if not ln: continue
            self.L.append(ln if ln.endswith(":") or ln.startswith(".") or ln.startswith(";") else "    " + ln)

def wave_allreduce(g, v, op, st):
    g(f"{op}_dpp v{v}, v{v}, v{v} quad_perm:[1,0,3,2] {DPP}")
    g(f"{op}_dpp v{v}, v{v}, v{v} quad_perm:[2,3,0,1] {DPP}")
    g(f"{op}_dpp v{v}, v{v}, v{v} row_half_mirror {DPP}")
    g(f"{op}_dpp v{v}, v{v}, v{v} row_mirror {DPP}")
    for i in range(4): g(f"v_readlane_b32 s{st+i}, v{v}, {16*i}")
    g(f"v_mov_b32 v{v}, s{st}")
    for i in range(1, 4): g(f"{op} v{v}, s{st+i}, v{v}")

def round_bf16(g, v, t):
    g(f"v_cvt_pk_bf16_f32 v{t}, v{v}, v{v}")
    g(f"v_lshlrev_b32 v{v}, 16, v{t}")

def layernorm(g, x, tmp, st, lds_base, vlane, sb):
    s, m, t0, t1, r, t2, ad, t3 = range(tmp, tmp + 8)
    g(f"v_add_f32 v{s}, v{x}, v{x+1}")
    for i in range(2, 10): g(f"v_add_f32 v{s}, v{s}, v{x+i}")
    wave_allreduce(g, s, "v_add_f32", st)
    g(f"v_mul_f32 v{m}, {hex(f2u(1.0/640))}, v{s}")
    g(f"v_sub_f32 v{t0}, v{x}, v{m}")
    g(f"v_mul_f32 v{s}, v{t0}, v{t0}")
    for i in range(1, 10):
        g(f"v_sub_f32 v{t0}, v{x+i}, v{m}")
        g(f"v_fmac_f32 v{s}, v{t0}, v{t0}")
    wave_allreduce(g, s, "v_add_f32", st)
    g(f"v_mul_f32 v{s}, {hex(f2u(1.0/640))}, v{s}")
    round_bf16(g, s, t0)
    round_bf16(g, m, t0)
    g(f"v_add_f32 v{s}, {hex(f2u(1e-5))}, v{s}")
    round_bf16(g, s, t0)
    g(f"v_sqrt_f32 v{s}, v{s}")
    round_bf16(g, s, t0)
    g(f"v_rcp_f32 v{r}, v{s}")
    g(f"v_lshlrev_b32 v{ad}, 5, v{vlane}")
    g(f"v_add_u32 v{ad}, s{sb}, v{ad}")
    for k in range(5):
        a, b = x + 2 * k, x + 2 * k + 1
        g(f"v_sub_f32 v{a}, v{a}, v{m}")
        g(f"v_sub_f32 v{b}, v{b}, v{m}")
        g(f"v_cvt_pk_bf16_f32 v{t0}, v{a}, v{b}")
        g(f"v_lshlrev_b32 v{a}, 16, v{t0}")
        g(f"v_and_b32 v{b}, 0xffff0000, v{t0}")
        for e in (a, b):
            g(f"v_mul_f32 v{t0}, v{e}, v{r}")
            g(f"v_fma_f32 v{t1}, -v{t0}, v{s}, v{e}")
            g(f"v_fma_f32 v{e}, v{t1}, v{r}, v{t0}")
        g(f"v_cvt_pk_bf16_f32 v{t3}, v{a}, v{b}")
        g(f"v_and_b32 v{a}, 0xffff, v{t3}")
        g(f"v_lshlrev_b32 v{b}, 16, v{t3}")
        g(f"ds_write_b64 v{ad}, v[{a}:{b}] offset:{lds_base + k*128*16}")
        g(f"v_lshrrev_b32 v{t0}, 16, v{t3}")
        g(f"v_and_b32 v{t1}, 0xffff0000, v{t3}")
        g(f"ds_write_b64 v{ad}, v[{t0}:{t1}] offset:{lds_base + k*128*16 + 16}")

def gemv_compute(g, passes, vW, vA, vacc, varow, lds_a, rp):
    for p in range(passes):
        g(f"ds_read_b128 v[{vA+4*p}:{vA+4*p+3}], v{varow} offset:{lds_a + p*rp*16}")
    for i in range(16): g(f"v_mov_b32 v{vacc+i}, 0")
    for p in range(passes):
        g(f"s_waitcnt vmcnt({passes-1-p}) lgkmcnt({min(15, passes-1-p)})")
        for i in range(4):
            for b in range(2):
                g(f"v_dot2c_f32_bf16 v{vacc+b*8+2*i}, v{vW+4*p+i}, v{vA+4*p+2*b}")
                g(f"v_dot2c_f32_bf16 v{vacc+b*8+2*i+1}, v{vW+4*p+i}, v{vA+4*p+2*b+1}")

def gemv_reduce(g, CL, NWV, vacc, vtid, lds_red, t, ssave):
    steps = []
    if CL <= 1: steps.append("quad_perm:[1,0,3,2]")
    if CL <= 2: steps.append("quad_perm:[2,3,0,1]")
    if CL <= 4: steps.append("row_ror:4")
    if CL <= 8: steps.append("row_ror:8")
    for stp in steps:
        for i in range(16):
            g(f"v_add_f32_dpp v{vacc+i}, v{vacc+i}, v{vacc+i} {stp} {DPP}")
    g(f"v_and_b32 v{t}, 15, v{vtid}")
    g(f"v_lshrrev_b32 v{t+1}, 4, v{vtid}")
    g(f"v_mul_u32_u24 v{t+1}, {CL}, v{t+1}")
    g(f"v_add_u32 v{t+1}, v{t+1}, v{t}")
    g(f"v_lshlrev_b32 v{t+1}, 6, v{t+1}")
    g(f"v_cmp_gt_u32 vcc, {CL}, v{t}")
    g(f"s_and_saveexec_b64 s[{ssave}:{ssave+1}], vcc")
    for i in range(4):
        g(f"ds_write_b128 v{t+1}, v[{vacc+4*i}:{vacc+4*i+3}] offset:{lds_red + 16*i}")
    g(f"s_mov_b64 exec, s[{ssave}:{ssave+1}]")
    g("s_waitcnt lgkmcnt(0)")
    g("s_barrier")
    n = NWV * 4
    g(f"v_lshlrev_b32 v{t+1}, 2, v{vtid}")
    g(f"v_cmp_gt_u32 vcc, {CL*16}, v{vtid}")
    g(f"s_and_saveexec_b64 s[{ssave}:{ssave+1}], vcc")
    g("s_cbranch_execz L_end_%s" % g.name)
    for i in range(n):
        g(f"ds_read_b32 v{vacc+i}, v{t+1} offset:{lds_red + i*CL*64}")
    g("s_waitcnt lgkmcnt(0)")
    g(f"v_add_f32 v{t}, v{vacc}, v{vacc+1}")
    for i in range(2, n): g(f"v_add_f32 v{t}, v{t}, v{vacc+i}")

def header(g, name):
    g.name = name
    g(f".globl {name}")
    g(".p2align 8")
    g(f".type {name},@function")
    g(f"{name}:")

def desc(name, vgpr, sgpr=102):
    acc = (vgpr + 3) // 4 * 4
    return f""".amdhsa_kernel {name}
  .amdhsa_next_free_vgpr {vgpr}
  .amdhsa_next_free_sgpr {sgpr}
  .amdhsa_accum_offset {acc}
  .amdhsa_group_segment_fixed_size 0
  .amdhsa_kernarg_size 88
  .amdhsa_user_sgpr_count 2
  .amdhsa_user_sgpr_kernarg_segment_ptr 1
  .amdhsa_system_sgpr_workgroup_id_x 1
.end_amdhsa_kernel
.p2align 6"""

def load_x_unpack(g, x, vlane, sptr, t, sboff):
    g(f"v_lshlrev_b32 v{t+5}, 2, v{vlane}")
    g(f"v_add_u32 v{t+5}, s{sboff}, v{t+5}")
    for k in range(5):
        g(f"global_load_dword v{t+k}, v{t+5}, s[{sptr}:{sptr+1}] offset:{k*256}")

def unpack5(g, x, t):
    for k in range(5):
        g(f"v_lshlrev_b32 v{x+2*k}, 16, v{t+k}")
        g(f"v_and_b32 v{x+2*k+1}, 0xffff0000, v{t+k}")

def k1(g):
    name = "qproj_kernel"
    header(g, name)
    NWG = 192
    g(f"""
    s_cmp_ge_u32 s2, {NWG}
    s_cbranch_scc1 L_end_{name}
    s_load_dwordx2 s[4:5], s[0:1], 0
    s_load_dwordx2 s[6:7], s[0:1], 24
    s_load_dwordx2 s[8:9], s[0:1], 80
    v_and_b32 v1, 63, v0
    v_lshrrev_b32 v2, 6, v0
    v_readfirstlane_b32 s10, v2
    v_and_b32 v3, 3, v0
    v_lshrrev_b32 v4, 2, v0
    s_mov_b32 s11, 12288
    v_mul_lo_u32 v5, v4, s11
    v_lshl_add_u32 v5, v3, 4, v5
    s_lshl_b32 s12, s2, 6
    v_add_u32 v5, s12, v5
    v_lshlrev_b32 v6, 4, v4
    s_mul_i32 s13, s10, 1280
    s_lshl_b32 s14, s10, 3
    s_waitcnt lgkmcnt(0)
    """)
    g(f"s_cmp_ge_u32 s10, 2")
    g(f"s_cbranch_scc1 L_k1_noln_a")
    load_x_unpack(g, 0, 1, 4, 20, 13)
    g("L_k1_noln_a:")
    for p in range(10):
        g(f"global_load_dwordx4 v[{40+4*p}:{43+4*p}], v5, s[6:7]")
        if p < 9:
            g(f"s_add_u32 s6, s6, {64*12288}")
            g(f"s_addc_u32 s7, s7, 0")
    g(f"""
    s_cmp_ge_u32 s2, 5
    s_cbranch_scc1 L_k1_nozero
    s_lshl_b32 s15, s2, 10
    v_lshlrev_b32 v7, 2, v0
    v_add_u32 v7, s15, v7
    v_add_u32 v7, {WS_HACC}, v7
    v_mov_b32 v8, 0
    global_store_dword v7, v8, s[8:9]
    s_waitcnt vmcnt(0)
    L_k1_nozero:
    s_cmp_ge_u32 s10, 2
    s_cbranch_scc1 L_k1_noln
    s_waitcnt vmcnt(10)
    """)
    unpack5(g, 10, 20)
    layernorm(g, 10, 26, 16, 0, 1, 14)
    g("L_k1_noln:")
    g("s_waitcnt lgkmcnt(0)")
    g("s_barrier")
    gemv_compute(g, 10, 40, 80, 120, 6, 0, 64)
    gemv_reduce(g, 4, 4, 120, 0, 640 * 16, 10, 20)
    g(f"""
    v_cvt_pk_bf16_f32 v10, v10, v10
    v_lshrrev_b32 v11, 4, v0
    v_lshlrev_b32 v11, 3, v11
    v_and_b32 v12, 7, v0
    v_add_u32 v11, v11, v12
    v_bfe_u32 v12, v0, 3, 1
    v_mul_u32_u24 v12, 6144, v12
    v_add_u32 v11, v11, v12
    s_lshl_b32 s12, s2, 5
    v_add_u32 v11, s12, v11
    v_lshlrev_b32 v11, 1, v11
    global_store_short v11, v10, s[8:9] offset:{WS_Q}
    L_end_{name}:
    s_endpgm
    """)
    return name, NWG, 256, 640 * 16 + 16 * 4 * 64, 140

def k2(g, S, NW, TG, D, nt):
    name = "attn_kernel"
    header(g, name)
    NWG = 64 * S
    KW = 8192 // S
    L = 3 * TG
    NIT = KW // (NW * TG * 8)
    assert NIT % D == 0
    step = NW * TG * 3072
    chunk = KW * 384
    NTS = " nt" if nt else ""
    vq = 4
    vacc = 16
    vm, vl = 40, 41
    vs = 42
    vp = 46
    vt = 54
    voff = [60, 61]
    vK = 64
    vV = vK + D * TG * 12
    nv = vV + D * TG * 12
    g(f"""
    s_cmp_ge_u32 s2, {NWG}
    s_cbranch_scc1 L_end_{name}
    s_load_dwordx4 s[4:7], s[0:1], 8
    s_load_dwordx2 s[8:9], s[0:1], 80
    v_and_b32 v1, 63, v0
    v_lshrrev_b32 v2, 6, v0
    v_and_b32 v3, 7, v0
    v_lshrrev_b32 v{vt}, 3, v1
    v_mul_u32_u24 v{vt+1}, {TG*8}, v2
    v_add_u32 v{vt}, v{vt}, v{vt+1}
    v_mul_u32_u24 v{voff[0]}, 384, v{vt}
    v_lshl_add_u32 v{voff[0]}, v3, 4, v{voff[0]}
    v_add_u32 v{voff[1]}, 6144, v{voff[0]}
    s_mul_i32 s10, s2, {chunk}
    s_mul_hi_u32 s11, s2, {chunk}
    s_lshr_b32 s20, s2, {S.bit_length()-1}
    s_mul_i32 s21, s20, 384
    v_lshlrev_b32 v{vt}, 4, v3
    v_add_u32 v{vt}, s21, v{vt}
    s_waitcnt lgkmcnt(0)
    s_add_u32 s12, s4, s10
    s_addc_u32 s13, s5, s11
    s_mov_b32 s14, {chunk}
    s_mov_b32 s15, 0x00020000
    s_add_u32 s16, s6, s10
    s_addc_u32 s17, s7, s11
    s_mov_b32 s18, {chunk}
    s_mov_b32 s19, 0x00020000
    """)
    for j in range(3):
        g(f"global_load_dwordx4 v[{vq+4*j}:{vq+4*j+3}], v{vt}, s[8:9] offset:{WS_Q + j*128}")
    def issue(kind, slot, soff):
        base = (vK if kind == "K" else vV) + slot * TG * 12
        srd = "s[12:15]" if kind == "K" else "s[16:19]"
        for gi in range(TG):
            for j in range(3):
                r = base + gi * 12 + j * 4
                g(f"buffer_load_dwordx4 v[{r}:{r+3}], v{voff[gi//2]}, {srd}, {soff} offen offset:{(gi%2)*3072 + j*128}{NTS}")
    g("s_mov_b32 s22, 0")
    for t in range(D):
        issue("K", t, "s22")
        issue("V", t, "s22")
        g(f"s_add_u32 s22, s22, {step}")
    for i in range(24): g(f"v_mov_b32 v{vacc+i}, 0")
    g(f"v_mov_b32 v{vm}, {hex(NEG_INF)}")
    g(f"v_mov_b32 v{vl}, 0")
    g(f"s_mov_b32 s23, {NIT // D}")
    g(f"s_mov_b32 s24, {hex(SCALE)}")
    g(f"s_mov_b32 s25, {hex(LOG2E)}")
    g("L_attn_loop:")
    N = (2 * D - 1) * L
    for slot in range(D):
        kb = vK + slot * TG * 12
        vb = vV + slot * TG * 12
        for gi in range(TG): g(f"v_mov_b32 v{vs+gi}, 0")
        g(f"s_waitcnt vmcnt({N})")
        for i in range(12):
            for gi in range(TG):
                g(f"v_dot2c_f32_bf16 v{vs+gi}, v{kb+gi*12+i}, v{vq+i}")
        issue("K", slot, "s22")
        for stp in ("quad_perm:[1,0,3,2]", "quad_perm:[2,3,0,1]", "row_half_mirror"):
            for gi in range(TG):
                g(f"v_add_f32_dpp v{vs+gi}, v{vs+gi}, v{vs+gi} {stp} {DPP}")
        for gi in range(0, TG, 2):
            a, b = vs + gi, vs + gi + 1
            g(f"v_cvt_pk_bf16_f32 v{vt}, v{a}, v{b}")
            g(f"v_lshlrev_b32 v{a}, 16, v{vt}")
            g(f"v_and_b32 v{b}, 0xffff0000, v{vt}")
            g(f"v_mul_f32 v{a}, s24, v{a}")
            g(f"v_mul_f32 v{b}, s24, v{b}")
            g(f"v_cvt_pk_bf16_f32 v{vt}, v{a}, v{b}")
            g(f"v_lshlrev_b32 v{a}, 16, v{vt}")
            g(f"v_and_b32 v{b}, 0xffff0000, v{vt}")
        g(f"v_max3_f32 v{vt+1}, v{vm}, v{vs}, v{vs+1}")
        for gi in range(2, TG, 2):
            g(f"v_max3_f32 v{vt+1}, v{vt+1}, v{vs+gi}, v{vs+gi+1}")
        g(f"v_sub_f32 v{vt+2}, v{vm}, v{vt+1}")
        g(f"v_mov_b32 v{vm}, v{vt+1}")
        g(f"v_mul_f32 v{vt+2}, s25, v{vt+2}")
        for gi in range(TG):
            g(f"v_sub_f32 v{vs+gi}, v{vs+gi}, v{vm}")
            g(f"v_mul_f32 v{vs+gi}, s25, v{vs+gi}")
        g(f"v_exp_f32 v{vt+2}, v{vt+2}")
        for gi in range(TG): g(f"v_exp_f32 v{vs+gi}, v{vs+gi}")
        g(f"v_mov_b32 v{vt+3}, v{vt+2}")
        g(f"v_mul_f32 v{vl}, v{vl}, v{vt+2}")
        for gi in range(TG):
            g(f"v_add_f32 v{vl}, v{vl}, v{vs+gi}")
            g(f"v_cvt_pk_bf16_f32 v{vp+2*gi}, v{vs+gi}, 0")
            g(f"v_cvt_pk_bf16_f32 v{vp+2*gi+1}, 0, v{vs+gi}")
        for i in range(0, 24, 2):
            g(f"v_pk_mul_f32 v[{vacc+i}:{vacc+i+1}], v[{vacc+i}:{vacc+i+1}], v[{vt+2}:{vt+3}]")
        g(f"s_waitcnt vmcnt({N})")
        for gi in range(TG):
            for i in range(12):
                g(f"v_dot2c_f32_bf16 v{vacc+2*i}, v{vb+gi*12+i}, v{vp+2*gi}")
                g(f"v_dot2c_f32_bf16 v{vacc+2*i+1}, v{vb+gi*12+i}, v{vp+2*gi+1}")
        issue("V", slot, "s22")
        g(f"s_add_u32 s22, s22, {step}")
    g("s_sub_u32 s23, s23, 1")
    g("s_cmp_lg_u32 s23, 0")
    g("s_cbranch_scc1 L_attn_loop")
    g("s_waitcnt vmcnt(0)")
    LM = 0
    LL = 64
    LO = 512
    g(f"v_max_f32_dpp v{vt}, v{vm}, v{vm} row_ror:8 {DPP}")
    for i in range(4): g(f"v_readlane_b32 s{26+i}, v{vt}, {16*i}")
    g(f"v_mov_b32 v{vt}, s26")
    for i in range(1, 4): g(f"v_max_f32 v{vt}, s{26+i}, v{vt}")
    g(f"v_lshlrev_b32 v{vt+1}, 2, v2")
    g(f"ds_write_b32 v{vt+1}, v{vt} offset:{LM}")
    g("s_waitcnt lgkmcnt(0)")
    g("s_barrier")
    g(f"v_mov_b32 v{vt+1}, 0")
    for i in range(NW // 4):
        g(f"ds_read_b128 v[{vK+4*i}:{vK+4*i+3}], v{vt+1} offset:{LM+16*i}")
    g("s_waitcnt lgkmcnt(0)")
    g(f"v_max_f32 v{vt}, v{vK}, v{vK+1}")
    for i in range(2, NW): g(f"v_max_f32 v{vt}, v{vt}, v{vK+i}")
    g(f"v_sub_f32 v{vt+2}, v{vm}, v{vt}")
    g(f"v_mul_f32 v{vt+2}, s25, v{vt+2}")
    g(f"v_exp_f32 v{vt+2}, v{vt+2}")
    g(f"v_mov_b32 v{vm}, v{vt}")
    g(f"v_mul_f32 v{vl}, v{vl}, v{vt+2}")
    for i in range(24): g(f"v_mul_f32 v{vacc+i}, v{vacc+i}, v{vt+2}")
    g(f"v_add_f32_dpp v{vl}, v{vl}, v{vl} row_ror:8 {DPP}")
    for i in range(24): g(f"v_add_f32_dpp v{vacc+i}, v{vacc+i}, v{vacc+i} row_ror:8 {DPP}")
    g(f"""
    v_lshrrev_b32 v{vt+1}, 4, v0
    v_mul_u32_u24 v{vt+2}, 768, v{vt+1}
    v_lshl_add_u32 v{vt+2}, v3, 5, v{vt+2}
    v_lshlrev_b32 v{vt+1}, 2, v{vt+1}
    v_and_b32 v{vt+3}, 8, v0
    v_cmp_eq_u32 vcc, 0, v{vt+3}
    s_and_saveexec_b64 s[30:31], vcc
    """)
    for j in range(3):
        for hh in range(2):
            r = vacc + j * 8 + hh * 4
            g(f"ds_write_b128 v{vt+2}, v[{r}:{r+3}] offset:{LO + j*256 + hh*16}")
    g(f"ds_write_b32 v{vt+1}, v{vl} offset:{LL}")
    g("s_mov_b64 exec, s[30:31]")
    g("s_waitcnt lgkmcnt(0)")
    g("s_barrier")
    n = NW * 4
    g(f"""
    v_cmp_gt_u32 vcc, 192, v0
    s_and_saveexec_b64 s[30:31], vcc
    s_cbranch_execz L_end_{name}
    v_lshlrev_b32 v{vt+1}, 2, v0
    v_mov_b32 v{vt+2}, 0
    """)
    assert nv - vK >= 2 * 16
    g(f"v_mov_b32 v{vt+4}, 0")
    g(f"v_mov_b32 v{vt+5}, 0")
    for base in range(0, n, 16):
        for i in range(16):
            g(f"ds_read_b32 v{vK+i}, v{vt+1} offset:{LO + (base+i)*768}")
        for i in range(4):
            g(f"ds_read_b128 v[{vK+16+4*i}:{vK+16+4*i+3}], v{vt+2} offset:{LL + base*4 + 16*i}")
        g("s_waitcnt lgkmcnt(0)")
        for i in range(16):
            g(f"v_add_f32 v{vt+4}, v{vt+4}, v{vK+i}")
            g(f"v_add_f32 v{vt+5}, v{vt+5}, v{vK+16+i}")
    g(f"""
    s_lshl_b32 s26, s2, {PART_STRIDE.bit_length()-1}
    s_add_u32 s26, s26, {WS_PART}
    v_add_u32 v{vt+1}, s26, v{vt+1}
    global_store_dword v{vt+1}, v{vt+4}, s[8:9]
    v_cmp_eq_u32 vcc, 0, v0
    s_and_saveexec_b64 s[30:31], vcc
    s_cbranch_execz L_end_{name}
    v_mov_b32 v{vt+4}, v{vm}
    global_store_dwordx2 v{vt+1}, v[{vt+4}:{vt+5}], s[8:9] offset:768
    L_end_{name}:
    s_endpgm
    """)
    return name, NWG, NW * 64, LO + n * 768, nv

def k3(g, S):
    name = "oproj_kernel"
    header(g, name)
    NWG = 320
    g(f"""
    s_cmp_ge_u32 s2, {NWG}
    s_cbranch_scc1 L_end_{name}
    s_load_dwordx2 s[6:7], s[0:1], 32
    s_load_dwordx2 s[8:9], s[0:1], 80
    s_mul_hi_u32 s10, s2, {(2**32 + 9)//10}
    s_mul_i32 s11, s10, 10
    s_sub_u32 s11, s2, s11
    v_and_b32 v3, 7, v0
    v_lshrrev_b32 v4, 3, v0
    v_mul_u32_u24 v5, 1280, v4
    v_lshl_add_u32 v5, v3, 4, v5
    s_mul_i32 s12, s10, {192*1280}
    s_lshl_b32 s13, s11, 7
    s_add_u32 s12, s12, s13
    v_add_u32 v5, s12, v5
    v_lshlrev_b32 v6, 4, v4
    v_min_u32 v7, 191, v0
    v_lshlrev_b32 v7, 2, v7
    s_mul_i32 s14, s10, {S*PART_STRIDE}
    s_add_u32 s14, s14, {WS_PART}
    v_add_u32 v7, s14, v7
    v_mov_b32 v8, s14
    s_mov_b32 s25, {hex(LOG2E)}
    s_waitcnt lgkmcnt(0)
    """)
    assert S <= 4
    for b in range(2):
        if b == 1:
            g(f"v_add_u32 v7, {32*S*PART_STRIDE}, v7")
            g(f"v_add_u32 v8, {32*S*PART_STRIDE}, v8")
        for s in range(S):
            g(f"global_load_dword v{20+b*S+s}, v7, s[8:9] offset:{s*PART_STRIDE}")
            g(f"global_load_dwordx2 v[{32+2*(b*S+s)}:{33+2*(b*S+s)}], v8, s[8:9] offset:{s*PART_STRIDE+768}")
    for p in range(6):
        g(f"global_load_dwordx4 v[{60+4*p}:{63+4*p}], v5, s[6:7]")
        if p < 5:
            g(f"s_add_u32 s6, s6, {32*1280}")
            g(f"s_addc_u32 s7, s7, 0")
    g("s_waitcnt vmcnt(6)")
    for b in range(2):
        M = lambda s: 32 + 2 * (b * S + s)
        g(f"v_mov_b32 v10, v{M(0)}")
        for s in range(1, S): g(f"v_max_f32 v10, v10, v{M(s)}")
        g("v_mov_b32 v11, 0")
        g("v_mov_b32 v12, 0")
        for s in range(S):
            g(f"v_sub_f32 v13, v{M(s)}, v10")
            g(f"v_mul_f32 v13, s25, v13")
            g(f"v_exp_f32 v13, v13")
            g(f"v_fmac_f32 v11, v13, v{M(s)+1}")
            g(f"v_fmac_f32 v12, v13, v{20+b*S+s}")
        g("v_rcp_f32 v13, v11")
        g("v_mul_f32 v14, v12, v13")
        g("v_fma_f32 v15, -v14, v11, v12")
        g("v_fma_f32 v14, v15, v13, v14")
        g(f"v_cvt_pk_bf16_f32 v{16+2*b}, v14, 0")
        g(f"v_cvt_pk_bf16_f32 v{17+2*b}, 0, v14")
    g(f"""
    v_lshlrev_b32 v9, 4, v0
    v_cmp_gt_u32 vcc, 192, v0
    s_and_saveexec_b64 s[20:21], vcc
    ds_write_b128 v9, v[16:19]
    s_mov_b64 exec, s[20:21]
    s_waitcnt lgkmcnt(0)
    s_barrier
    """)
    gemv_compute(g, 6, 60, 84, 108, 6, 0, 32)
    gemv_reduce(g, 8, 4, 108, 0, 192 * 16, 10, 20)
    g(f"""
    v_lshrrev_b32 v11, 4, v0
    v_lshlrev_b32 v11, 3, v11
    v_and_b32 v12, 7, v0
    v_add_u32 v11, v11, v12
    v_bfe_u32 v12, v0, 3, 1
    v_mul_u32_u24 v12, 640, v12
    v_add_u32 v11, v11, v12
    s_lshl_b32 s12, s11, 6
    v_add_u32 v11, s12, v11
    v_lshlrev_b32 v11, 2, v11
    v_add_u32 v11, {WS_HACC}, v11
    global_atomic_add_f32 v11, v10, s[8:9]
    L_end_{name}:
    s_endpgm
    """)
    return name, NWG, 256, 192 * 16 + 16 * 8 * 64, 128

def k4(g):
    name = "ffn1_kernel"
    header(g, name)
    NWG = 96
    g(f"""
    s_cmp_ge_u32 s2, {NWG}
    s_cbranch_scc1 L_end_{name}
    s_load_dwordx2 s[4:5], s[0:1], 0
    s_load_dwordx2 s[6:7], s[0:1], 48
    s_load_dwordx2 s[8:9], s[0:1], 80
    v_and_b32 v1, 63, v0
    v_lshrrev_b32 v2, 6, v0
    v_readfirstlane_b32 s10, v2
    v_and_b32 v3, 1, v0
    v_lshrrev_b32 v4, 1, v0
    v_mul_u32_u24 v5, 3072, v4
    v_lshl_add_u32 v5, v3, 4, v5
    s_lshl_b32 s12, s2, 5
    v_add_u32 v5, s12, v5
    v_lshlrev_b32 v6, 4, v4
    s_mul_i32 s13, s10, 1280
    s_lshl_b32 s14, s10, 3
    s_waitcnt lgkmcnt(0)
    s_cmp_ge_u32 s10, 2
    s_cbranch_scc1 L_k4_noln_a
    """)
    load_x_unpack(g, 0, 1, 4, 20, 13)
    g(f"""
    s_lshl_b32 s15, s13, 1
    s_add_u32 s15, s15, {WS_HACC}
    v_lshlrev_b32 v7, 3, v1
    v_add_u32 v7, s15, v7
    """)
    for k in range(5):
        g(f"global_load_dwordx2 v[{30+2*k}:{31+2*k}], v7, s[8:9] offset:{k*512}")
    g("L_k4_noln_a:")
    for p in range(5):
        g(f"global_load_dwordx4 v[{40+4*p}:{43+4*p}], v5, s[6:7]")
        if p < 4:
            g(f"s_add_u32 s6, s6, {128*3072}")
            g(f"s_addc_u32 s7, s7, 0")
    g(f"""
    s_cmp_ge_u32 s10, 2
    s_cbranch_scc1 L_k4_noln
    s_waitcnt vmcnt(5)
    """)
    unpack5(g, 10, 20)
    for k in range(5):
        a, b = 30 + 2 * k, 31 + 2 * k
        g(f"v_cvt_pk_bf16_f32 v26, v{a}, v{b}")
        g(f"v_lshlrev_b32 v{a}, 16, v26")
        g(f"v_and_b32 v{b}, 0xffff0000, v26")
        g(f"v_add_f32 v{a}, v{a}, v{10+2*k}")
        g(f"v_add_f32 v{b}, v{b}, v{11+2*k}")
        g(f"v_cvt_pk_bf16_f32 v26, v{a}, v{b}")
        g(f"v_lshlrev_b32 v{10+2*k}, 16, v26")
        g(f"v_and_b32 v{11+2*k}, 0xffff0000, v26")
    layernorm(g, 10, 26, 16, 0, 1, 14)
    g("L_k4_noln:")
    g("s_waitcnt lgkmcnt(0)")
    g("s_barrier")
    gemv_compute(g, 5, 40, 60, 80, 6, 0, 128)
    gemv_reduce(g, 2, 4, 80, 0, 640 * 16, 10, 20)
    g(f"""
    v_cvt_pk_bf16_f32 v12, v10, v10
    v_lshlrev_b32 v10, 16, v12
    v_mul_f32 v12, {hex(f2u(-1.4426950408889634))}, v10
    v_exp_f32 v12, v12
    v_add_f32 v12, 1.0, v12
    v_rcp_f32 v13, v12
    v_mul_f32 v14, v10, v13
    v_fma_f32 v15, -v14, v12, v10
    v_fma_f32 v14, v15, v13, v14
    v_cmp_nge_f32 vcc, {hex(f2u(-80.0))}, v10
    v_cndmask_b32 v14, 0, v14, vcc
    v_cvt_pk_bf16_f32 v16, v14, 0
    v_cvt_pk_bf16_f32 v17, 0, v14
    v_lshrrev_b32 v11, 4, v0
    v_lshlrev_b32 v11, 3, v11
    v_and_b32 v12, 7, v0
    v_add_u32 v11, v11, v12
    s_lshl_b32 s12, s2, 4
    v_add_u32 v11, s12, v11
    v_lshlrev_b32 v11, 4, v11
    v_and_b32 v12, 8, v0
    v_add_u32 v11, v11, v12
    v_add_u32 v11, {WS_H1}, v11
    global_store_dwordx2 v11, v[16:17], s[8:9]
    L_end_{name}:
    s_endpgm
    """)
    return name, NWG, 256, 640 * 16 + 16 * 2 * 64, 100

def k5(g):
    name = "ffn2_kernel"
    header(g, name)
    NWG = 80
    g(f"""
    s_cmp_ge_u32 s2, {NWG}
    s_cbranch_scc1 L_end_{name}
    s_load_dwordx2 s[4:5], s[0:1], 0
    s_load_dwordx4 s[16:19], s[0:1], 56
    s_load_dwordx2 s[8:9], s[0:1], 80
    v_mul_u32_u24 v5, 1280, v0
    s_lshl_b32 s12, s2, 4
    v_add_u32 v5, s12, v5
    v_lshlrev_b32 v6, 4, v0
    v_add_u32 v6, {WS_H1}, v6
    v_and_b32 v12, 7, v0
    v_bfe_u32 v13, v0, 3, 1
    v_mul_u32_u24 v13, 640, v13
    v_add_u32 v12, v12, v13
    s_lshl_b32 s13, s2, 3
    v_add_u32 v12, s13, v12
    v_lshlrev_b32 v13, 1, v12
    v_lshlrev_b32 v14, 2, v12
    v_add_u32 v14, {WS_HACC}, v14
    s_waitcnt lgkmcnt(0)
    global_load_ushort v15, v13, s[4:5]
    global_load_dword v16, v14, s[8:9]
    """)
    for p in range(6):
        g(f"global_load_dwordx4 v[{64+4*p}:{67+4*p}], v6, s[8:9]")
        g(f"global_load_dwordx4 v[{40+4*p}:{43+4*p}], v5, s[16:17]")
        if p < 5:
            g(f"s_add_u32 s16, s16, {256*1280}")
            g(f"s_addc_u32 s17, s17, 0")
            g(f"v_add_u32 v6, 4096, v6")
    vacc = 88
    for i in range(16): g(f"v_mov_b32 v{vacc+i}, 0")
    for p in range(6):
        g(f"s_waitcnt vmcnt({2*(5-p)})")
        for i in range(4):
            for b in range(2):
                g(f"v_dot2c_f32_bf16 v{vacc+b*8+2*i}, v{40+4*p+i}, v{64+4*p+2*b}")
                g(f"v_dot2c_f32_bf16 v{vacc+b*8+2*i+1}, v{40+4*p+i}, v{64+4*p+2*b+1}")
    gemv_reduce(g, 1, 4, vacc, 0, 0, 10, 20)
    g(f"""
    v_lshlrev_b32 v15, 16, v15
    v_cvt_pk_bf16_f32 v16, v16, v16
    v_lshlrev_b32 v16, 16, v16
    v_add_f32 v15, v15, v16
    v_cvt_pk_bf16_f32 v15, v15, v15
    v_lshlrev_b32 v15, 16, v15
    v_cvt_pk_bf16_f32 v10, v10, v10
    v_lshlrev_b32 v10, 16, v10
    v_add_f32 v10, v10, v15
    v_cvt_pk_bf16_f32 v10, v10, v10
    global_store_short v13, v10, s[18:19]
    L_end_{name}:
    s_endpgm
    """)
    return name, NWG, 256, 16 * 64, 112

def build(S=4, NW=8, TG=2, D=2, nt=1, only=None):
    g = G()
    ks = [k1(g), k2(g, S, NW, TG, D, nt), k3(g, S), k4(g), k5(g)]
    head = []
    for (name, nwg, nt_, lds, vg) in ks:
        if only and name not in only: continue
        head.append(f"; @launch kernel={name} grid=({nwg},1,1) block=({nt_},1,1) lds={lds}")
    body = fix_hazards(g.L)
    txt = "\n".join(head) + '\n.amdgcn_target "amdgcn-amd-amdhsa--gfx950"\n.text\n' + "\n".join(body)
    txt += '\n.section .rodata,"a"\n.p2align 6\n' + "\n".join(desc(k[0], k[4]) for k in ks) + "\n"
    return txt

if __name__ == "__main__":
    import argparse
    ap = argparse.ArgumentParser()
    ap.add_argument("out")
    for k, d in (("S", 4), ("NW", 8), ("TG", 2), ("D", 2), ("nt", 1)): ap.add_argument("--" + k, type=int, default=d)
    ap.add_argument("--only", default=None)
    a = ap.parse_args()
    open(a.out, "w").write(build(a.S, a.NW, a.TG, a.D, a.nt, a.only.split(",") if a.only else None))
```
